```python
import torch

def _softmax(x, axis=-1):
    return torch.softmax(x, dim=axis)
def _gelu(x):
    return torch.nn.functional.gelu(x, approximate="tanh")
def _silu(x):
    return torch.nn.functional.silu(x)
def _sigmoid(x):
    return torch.sigmoid(x)
def _layernorm(x, axis=-1, eps=1e-5):
    m = x.mean(dim=axis, keepdim=True)
    v = x.var(dim=axis, keepdim=True, unbiased=False)
    return (x - m) / torch.sqrt(v + eps)
def _scatter_add(tgt, idx, src, axis=0):
    return tgt.clone().index_add_(axis, idx, src)
def _segment_sum(src, seg, n):
    out = torch.zeros((n,) + src.shape[1:], dtype=src.dtype)
    return out.index_add_(0, seg, src)
def _pad(x, pw):
    flat = tuple(v for pair in reversed(pw) for v in pair)
    return torch.nn.functional.pad(x, flat)

kernel_name = 'concat_heads__mha_block_cached__mha_block_cached__near_ridge'

def setup_inputs():

    _w = (lambda a: (lambda t: t.to(torch.bfloat16) if t.is_floating_point() else t)(torch.as_tensor(a)))
    def _A_setup():
        B, Sq, D = 8, 256, 448
        H, Sk, Dh = 16, 1024, 256
        return {
            "x": _w((lambda *s: torch.randn(*s, dtype=torch.bfloat16) * 0.8)(B, Sq, D)),
            "k_cache": _w((lambda *s: torch.randn(*s, dtype=torch.bfloat16) * 0.8)(B, H, Sk, Dh)),
            "v_cache": _w((lambda *s: torch.randn(*s, dtype=torch.bfloat16) * 0.05)(B, H, Sk, Dh)),
            "wq": _w((lambda *s: torch.randn(*s, dtype=torch.bfloat16) * 0.8)(D, H * Dh) * (D ** -0.5)),
            "wo": _w((lambda *s: torch.randn(*s, dtype=torch.bfloat16) * 0.05)(H * Dh, D) * ((H * Dh) ** -0.5)),
        }
    _A_in = _A_setup()

    def _B_setup():
        B, Sq, D = 8, 256, 448
        H, Sk, Dh = 16, 1024, 256
        return {
            "x": _w((lambda *s: torch.randn(*s, dtype=torch.bfloat16) * 0.8)(B, Sq, D)),
            "k_cache": _w((lambda *s: torch.randn(*s, dtype=torch.bfloat16) * 0.8)(B, H, Sk, Dh)),
            "v_cache": _w((lambda *s: torch.randn(*s, dtype=torch.bfloat16) * 0.05)(B, H, Sk, Dh)),
            "wq": _w((lambda *s: torch.randn(*s, dtype=torch.bfloat16) * 0.8)(D, H * Dh) * (D ** -0.5)),
            "wo": _w((lambda *s: torch.randn(*s, dtype=torch.bfloat16) * 0.05)(H * Dh, D) * ((H * Dh) ** -0.5)),
        }
    _B_in = _B_setup()

    return {
        "A_x": _A_in["x"],
        "A_k_cache": _A_in["k_cache"],
        "A_v_cache": _A_in["v_cache"],
        "A_wq": _A_in["wq"],
        "A_wo": _A_in["wo"],
        "B_x": _B_in["x"],
        "B_k_cache": _B_in["k_cache"],
        "B_v_cache": _B_in["v_cache"],
        "B_wq": _B_in["wq"],
        "B_wo": _B_in["wo"],
    }

def reference(A_x, A_k_cache, A_v_cache, A_wq, A_wo, B_x, B_k_cache, B_v_cache, B_wq, B_wo):
    def _A_ref(x, k_cache, v_cache, wq, wo):
        B, Sq, D = x.shape
        H, Dh = 16, 256
        q = (lambda x, *d: x.permute(*d))((x @ wq).reshape(B, Sq, H, Dh), 0, 2, 1, 3)
        scores = torch.einsum("bhqd,bhkd->bhqk", q, k_cache) * (Dh ** -0.5)
        p = _softmax(scores, axis=-1)
        o = torch.einsum("bhqk,bhkd->bhqd", p, v_cache)
        return (lambda x, *d: x.permute(*d))(o, 0, 2, 1, 3).reshape(B, Sq, H * Dh) @ wo

    def _B_ref(x, k_cache, v_cache, wq, wo):
        B, Sq, D = x.shape
        H, Dh = 16, 256
        q = (lambda x, *d: x.permute(*d))((x @ wq).reshape(B, Sq, H, Dh), 0, 2, 1, 3)
        scores = torch.einsum("bhqd,bhkd->bhqk", q, k_cache) * (Dh ** -0.5)
        p = _softmax(scores, axis=-1)
        o = torch.einsum("bhqk,bhkd->bhqd", p, v_cache)
        return (lambda x, *d: x.permute(*d))(o, 0, 2, 1, 3).reshape(B, Sq, H * Dh) @ wo

    a = _A_ref(A_x, A_k_cache, A_v_cache, A_wq, A_wo)
    b = _B_ref(B_x, B_k_cache, B_v_cache, B_wq, B_wo)
    return torch.concatenate([a, b], axis=-1)
```

```python
import re

class Op:
    __slots__ = ("text", "kind", "tag", "need", "lds", "cost", "note")
    def __init__(self, text=None, kind=None, tag=None, need=None, lds=None, cost=1, note=None):
        self.text, self.kind, self.tag, self.need, self.lds, self.cost, self.note = text, kind, tag, need, lds, cost, note

def I(text, **kw):
    return Op(text=text, kind="ins", **kw)
def DS(text, tag, lds=None):
    return Op(text=text, kind="ds", tag=tag, lds=lds)
def VM(text, tag=None, lds=None):
    return Op(text=text, kind="vm", tag=tag, lds=lds)
def WAIT_DS(*tags):
    return Op(kind="wait_ds", need=set(tags))
def WAIT_VM(*tags):
    return Op(kind="wait_vm", need=set(tags))
def LABEL(name):
    return Op(text=name + ":", kind="label")
def BARRIER():
    return Op(text="s_barrier", kind="barrier")
def EXP(text):
    return Op(text=text, kind="ins", cost=2)

class Gaps:
    def __init__(self, mfmas, cap=2):
        self.m = mfmas
        self.n = len(mfmas)
        self.sc = [[] for _ in mfmas]
        self.ve = [[] for _ in mfmas]
        self.used = [0] * self.n
        self.cap = cap
        self.post = [[] for _ in mfmas]
    def s(self, k, op):
        self.sc[k].append(op)
    def v(self, k, op):
        self.ve[k].append(op); self.used[k] += op.cost
    def after(self, k, op):
        self.post[k].append(op)
    def place(self, op, earliest, latest=None):
        k = earliest
        while True:
            if k >= self.n:
                raise RuntimeError("no room for %s from gap %d" % (op.text, earliest))
            if self.used[k] + op.cost <= self.cap:
                if latest is not None and k > latest:
                    raise RuntimeError("%s placed at %d > latest %d" % (op.text, k, latest))
                self.v(k, op); return k
            k += 1
    def ops(self):
        out = []
        for k in range(self.n):
            out.append(self.m[k])
            out += self.sc[k]; out += self.ve[k]; out += self.post[k]
        return out

class Linear:
    def __init__(self):
        self.dsq = []
        self.vmq = []
        self.out = []
    def feed(self, ops):
        start = len(self.out)
        for o in ops:
            if o.kind == "ds":
                self.dsq.append(o.tag); self.out.append(o)
            elif o.kind == "vm":
                self.vmq.append(o.tag); self.out.append(o)
            elif o.kind == "wait_ds":
                n = self._drain(self.dsq, o.need, 15, "lgkm")
                self.out.append(Op(text="s_waitcnt lgkmcnt(%d)" % n, kind="waitds", tag=n))
            elif o.kind == "wait_vm":
                n = self._drain(self.vmq, o.need, 63, "vm")
                self.out.append(Op(text="s_waitcnt vmcnt(%d)" % n, kind="waitvm", tag=n))
            else:
                if o.kind == "ins" and o.text.startswith("s_waitcnt"):
                    m = re.search(r"vmcnt\((\d+)\)", o.text)
                    if m: del self.vmq[:max(0, len(self.vmq) - int(m.group(1)))]
                    m = re.search(r"lgkmcnt\((\d+)\)", o.text)
                    if m: del self.dsq[:max(0, len(self.dsq) - int(m.group(1)))]
                self.out.append(o)
        return self.out[start:]
    @staticmethod
    def _drain(q, need, cap, what):
        last = -1
        for i, t in enumerate(q):
            if t in need or "*" in need: last = i
        n = len(q) - 1 - last
        if n > cap:
            n = cap
        del q[:len(q) - n]
        return n

def texts(ops):
    return [o.text for o in ops]

_R = re.compile(r"\b([vas])(?:(\d+)|\[(\d+):(\d+)\])")
def regs(tok):
    out = set()
    for m in _R.finditer(tok):
        f = m.group(1)
        if m.group(2) is not None: out.add((f, int(m.group(2))))
        else:
            for i in range(int(m.group(3)), int(m.group(4)) + 1): out.add((f, i))
    if re.search(r"\bvcc\b", tok): out.add(("x", "vcc"))
    if re.search(r"\bm0\b", tok): out.add(("x", "m0"))
    if re.search(r"\bexec\b", tok): out.add(("x", "exec"))
    return out

TRANS = ("v_exp_f32", "v_log_f32", "v_rcp_f32", "v_rsq_f32", "v_sqrt_f32", "v_sin_f32", "v_cos_f32")
class P:
    __slots__ = ("mn", "cls", "w", "r", "C", "AB", "states", "op")
def parse(op):
    t = op.text.split(";")[0].strip()
    p = P(); p.op = op; p.C = set(); p.AB = set(); p.states = 1
    if op.kind == "label" or not t:
        p.mn = "label"; p.cls = "label"; p.w = set(); p.r = set(); p.states = 0; return p
    parts = t.split(None, 1)
    mn = parts[0]; ops = [x.strip() for x in parts[1].split(",")] if len(parts) > 1 else []
    p.mn = mn; p.w = set(); p.r = set()
    if mn.startswith("v_mfma"):
        p.cls = "mfma"; p.w = regs(ops[0]); p.AB = regs(ops[1]) | regs(ops[2]); p.C = regs(ops[3]); p.r = p.AB | p.C
    elif mn.startswith("v_cmp"):
        p.cls = "valu"; p.w = regs(ops[0]); p.r = set().union(*[regs(x) for x in ops[1:]])
    elif mn.startswith("v_permlane") and "swap" in mn:
        p.cls = "perm"; p.w = regs(ops[0]) | regs(ops[1]); p.r = set(p.w)
    elif mn in ("v_readfirstlane_b32", "v_readlane_b32"):
        p.cls = "rdlane"; p.w = regs(ops[0]); p.r = set().union(*[regs(x) for x in ops[1:]])
    elif mn.startswith("v_"):
        p.cls = "trans" if mn.replace("_e32", "").replace("_e64", "") in TRANS else "valu"
        p.w = regs(ops[0]); p.r = set().union(*[regs(x) for x in ops[1:]]) if len(ops) > 1 else set()
        if mn.startswith(("v_fmac", "v_dot2c", "v_pk_fmac")): p.r |= p.w
        if mn.startswith(("v_add_co", "v_addc_co", "v_sub_co")): p.w |= regs(ops[1])
        if mn.startswith("v_cndmask") and len(ops) == 4: p.r |= regs(ops[3])
    elif mn.startswith("ds_read"):
        p.cls = "dsr"; p.w = regs(ops[0]); p.r = regs(ops[1])
    elif mn.startswith("ds_write"):
        p.cls = "dsw"; p.r = set().union(*[regs(x) for x in ops])
    elif mn.startswith(("buffer_load", "global_load")):
        if re.search(r"\blds\b", t):
            p.cls = "dma"; p.r = set().union(*[regs(x) for x in ops]) | {("x", "m0")}
        else:
            p.cls = "vmld"; p.w = regs(ops[0]); p.r = set().union(*[regs(x) for x in ops[1:]])
    elif mn.startswith(("buffer_store", "global_store", "buffer_atomic", "global_atomic")):
        p.cls = "vmst"; p.r = set().union(*[regs(x) for x in ops])
        if mn.startswith(("buffer_atomic", "global_atomic")) and re.search(r"\bsc0\b", t): p.w = regs(ops[0])
    elif mn.startswith(("buffer_wbl2", "buffer_inv")):
        p.cls = "vmst"
    elif mn == "s_nop":
        p.cls = "salu"; p.states = int(ops[0], 0) + 1
    elif mn.startswith("s_cbranch") or mn in ("s_branch", "s_barrier", "s_waitcnt", "s_endpgm", "s_setprio", "s_sleep"):
        p.cls = "salu"
        if "vcc" in mn: p.r = {("x", "vcc")}
    elif mn.startswith("s_cmp") or mn.startswith("s_bitcmp"):
        p.cls = "salu"; p.r = set().union(*[regs(x) for x in ops])
    elif mn.startswith("s_"):
        p.cls = "salu"; p.w = regs(ops[0]) if ops else set(); p.r = set().union(*[regs(x) for x in ops[1:]]) if len(ops) > 1 else set()
    else:
        raise RuntimeError("unparsed: " + t)
    return p

VALUISH = ("valu", "trans", "perm", "rdlane")
def check_hazards(ops, name=""):
    ps = [parse(o) for o in ops]
    errs = []
    n = len(ps)
    def walk(i, limit):
        d = 0
        for j in range(i + 1, n):
            if d >= limit: return
            yield j, d
            d += ps[j].states
    for i, p in enumerate(ps):
        vw = {r for r in p.w if r[0] in "va"}
        sw = {r for r in p.w if r[0] == "s" or r == ("x", "vcc")}
        if p.cls in VALUISH:
            for j, d in walk(i, 5):
                q = ps[j]
                if q.cls == "mfma" and d < 2 and vw & q.r: errs.append((i, j, "VALU->MFMA operand needs 2"))
                if q.cls == "perm" and d < 2 and vw & q.r: errs.append((i, j, "VALU->permlane needs 2"))
                if q.cls == "rdlane" and d < 1 and vw & q.r: errs.append((i, j, "VALU->readlane needs 1"))
                if p.cls == "trans" and q.cls in ("valu", "perm", "rdlane") and d < 1 and vw & q.r: errs.append((i, j, "trans->VALU needs 1"))
                if sw and q.cls in ("dma", "vmld", "vmst") and d < 5 and sw & q.r: errs.append((i, j, "VALU sgpr->VMEM needs 5"))
                if sw and q.cls in VALUISH and d < 2 and sw & q.r: errs.append((i, j, "VALU sgpr->VALU needs 2"))
        if p.cls == "mfma":
            for j, d in walk(i, 8):
                q = ps[j]
                if q.cls == "mfma":
                    if d < 8 and p.w & q.AB: errs.append((i, j, "MFMA D->A/B needs 8"))
                    if p.w & q.C and p.w != q.C and d < 6: errs.append((i, j, "MFMA D->partial C needs 6"))
                    if p.w & q.w and not (p.w & q.C) and d < 8: errs.append((i, j, "MFMA WAW without chain"))
                elif q.cls in VALUISH or q.cls in ("dsr", "dsw", "vmld", "vmst", "dma"):
                    if d < 8 and p.w & (q.r | q.w): errs.append((i, j, "MFMA D->VALU/mem needs 8"))
                    if q.cls in VALUISH and d < 3 and p.C & q.w: errs.append((i, j, "MFMA C->VALU write needs 3"))
        if p.cls == "salu" and ("x", "m0") in p.w:
            for j, d in walk(i, 1):
                if ps[j].cls == "dma": errs.append((i, j, "M0->LDS-DMA needs 1"))
        if p.cls == "vmst" and re.search(r"x[34]\b", p.mn):
            data = regs(p.op.text.split(None, 1)[1].split(",")[0]) if p.mn.startswith("buffer") else set()
            for j, d in walk(i, 2):
                q = ps[j]
                if q.cls in VALUISH and data & q.w: errs.append((i, j, "store data->VALU write needs 2"))
                elif d < 1 and data & q.w: errs.append((i, j, "store data->write needs 1"))
    for i, j, e in errs[:20]:
        print("HAZARD[%s] %s:\n   %s\n   %s" % (name, e, ps[i].op.text, ps[j].op.text))
    return len(errs)

def check_counters(ops, name=""):
    dsq, vmq, errs = [], [], 0
    for o in ops:
        p = parse(o)
        if p.cls == "label": continue
        touched = {r for r in (p.r | p.w) if r[0] in "va"}
        for q, what in ((dsq, "lgkm"), (vmq, "vm")):
            for w, txt in q:
                if w & touched:
                    errs += 1
                    if errs < 20: print("COUNTER[%s] %s: %s touched before wait for: %s" % (name, what, o.text, txt))
        if p.mn == "s_waitcnt":
            m = re.search(r"lgkmcnt\((\d+)\)", o.text)
            if m: del dsq[:max(0, len(dsq) - int(m.group(1)))]
            m = re.search(r"vmcnt\((\d+)\)", o.text)
            if m: del vmq[:max(0, len(vmq) - int(m.group(1)))]
        if p.cls == "dsr": dsq.append((set(p.w), o.text))
        elif p.cls == "dsw": dsq.append((set(), o.text))
        elif p.cls == "vmld": vmq.append((set(p.w), o.text))
        elif p.cls in ("dma", "vmst"): vmq.append((set(p.w), o.text))
        if len(dsq) > 15 and p.cls in ("dsr", "dsw"):
            pass
    return errs

def check_lds(ops, name=""):
    errs = 0
    vmq, dsq = [], []
    landed, visible = set(), set()
    content = {}
    reads_open = {}
    reads_since_bar = set()
    def err(s):
        nonlocal errs
        errs += 1
        if errs < 20: print("LDS[%s] %s" % (name, s))
    for o in ops:
        if o.kind == "vm":
            vmq.append(o.lds)
            if o.lds is not None:
                slot, fill = o.lds[0], o.lds[1]
                old = content.get(slot)
                if old is not None and old != fill:
                    if reads_open.get(old, 0) or old in reads_since_bar:
                        err("fill %s into slot %s while reads of %s are not fenced by a barrier: %s" % (fill, slot, old, o.text))
                    if any(x is not None and x[0] == slot and x[1] == old for x in vmq):
                        err("fill %s into slot %s while older fill %s still in flight" % (fill, slot, old))
                content[slot] = fill
                visible.discard(fill); landed.discard(fill)
        elif o.kind == "ds":
            dsq.append(o.lds)
            if o.lds is not None:
                slot, fill = o.lds
                if content.get(slot) != fill: err("read of %s but slot %s holds %s: %s" % (fill, slot, content.get(slot), o.text))
                elif fill not in visible: err("read of %s before it is visible: %s" % (fill, o.text))
                reads_open[fill] = reads_open.get(fill, 0) + 1
                reads_since_bar.add(fill)
        elif o.kind in ("waitvm", "waitds") or (o.text and o.text.startswith("s_waitcnt")):
            m = re.search(r"vmcnt\((\d+)\)", o.text)
            if m:
                k = max(0, len(vmq) - int(m.group(1)))
                done, vmq = vmq[:k], vmq[k:]
                pend = {x[1] for x in vmq if x is not None}
                for x in done:
                    if x is not None and x[1] not in pend: landed.add(x[1])
            m = re.search(r"lgkmcnt\((\d+)\)", o.text)
            if m:
                k = max(0, len(dsq) - int(m.group(1)))
                done, dsq = dsq[:k], dsq[k:]
                for x in done:
                    if x is not None: reads_open[x[1]] -= 1
        elif o.kind == "barrier":
            visible |= landed
            reads_since_bar = {f for f, c in reads_open.items() if c > 0}
    return errs
```

```python
import sys, math
from core import *

NAME = "concat_heads__mha_block_cached__mha_block_cached__near_ridge"

class Cfg:
    mapping = 2
    stamps = False
    dump = None
    kv_flags = "nt"
    w_flags = ""
    st_flags = ""
    thr_log2 = 30

PITCH = 1056
SLOT = 16 * PITCH
NSLOT = 8
LDS_BYTES = NSLOT * SLOT
def slot_base(n): return (n % NSLOT) * SLOT

QF = 0
GX, GY, GZ = 128, 144, 160
PA, PB, PC = 176, 184, 192
NEGM = 200
F = 216
L = 232
LT = 236
T = 238
vK, vV, vDMA, vTMP = 246, 247, 248, 249
vLANE, vA, vB, vC, vD = 250, 251, 252, 253, 254
vWb, vW, vXr, vDW, vDX = 128, 129, 130, 131, 132
vO, vDO = 254, 252
OF_A, OF_B = 128, 144
OT = 160

sK, sV, sW, sX, sO, sP = 8, 12, 16, 20, 24, 28
sWAVE, sWOFF, sSOK, sSOV, sCNT, sTHR, sRET, sSCALE = 32, 33, 34, 35, 36, 37, 38, 39
sT0, sT1, sT2, sT3 = 40, 41, 42, 43
sGRP, sHEAD, sB, sBR = 44, 45, 46, 47
sSTAMP = 66

def vr(b, n=4): return "v[%d:%d]" % (b, b + n - 1)
def ar(b, n=4): return "a[%d:%d]" % (b, b + n - 1)
def MF(d, a, b, c): return Op(text="v_mfma_f32_16x16x32_bf16 %s, %s, %s, %s" % (d, a, b, c), kind="ins")
def ACC(db, qb): return 16 * db + 4 * qb

def fill_kind(n):
    if n < 28:
        u, r = divmod(n, 4)
        return [("XA", u), ("XB", u), ("W", u, 0), ("W", u, 1)][r]
    if n == 28: return ("K", 0)
    if n <= 93 and n % 2 == 1: return ("K", (n - 27) // 2)
    if n <= 92: return ("V", (n - 30) // 2)
    return ("O", n - 94)
def n_of(kind, *a):
    if kind == "X": return 4 * a[0]
    if kind == "W": return 4 * a[0] + 2 + a[1]
    if kind == "K": return 28 if a[0] == 0 else 27 + 2 * a[0]
    if kind == "V": return 30 + 2 * a[0]
    if kind == "O": return 94 + a[0]

def fill_pieces(cfg, n, dyn=False):
    k = fill_kind(n); base = slot_base(n); out = []
    if k[0] in "KV":
        srd = sK if k[0] == "K" else sV
        so = sSOK if k[0] == "K" else sSOV
        for i in range(4):
            pre = [I("s_add_u32 m0, s%d, %d" % (sWOFF, base + 544 * i))]
            if not dyn and i == 0: pre.append(I("s_mov_b32 s%d, 0x%x" % (sT0, k[1] * 16384)))
            sreg = so if dyn else sT0
            op = VM("buffer_load_dwordx4 v%d, s[%d:%d], s%d offen offset:%d %s lds" % (vDMA, srd, srd + 3, sreg, 512 * i, cfg.kv_flags),
                    tag=("fill", n), lds=(n % NSLOT, n))
            out.append((pre, op))
    elif k[0] == "W":
        u, e = k[1], k[2]
        for i, po in enumerate((0, 1032, 2112, 3144)):
            pre = [I("s_add_u32 m0, s%d, %d" % (sWOFF, base + po)),
                   I("s_mov_b32 s%d, 0x%x" % (sT0, u * 64 * 8192 + e * 256 + i * 8192))]
            op = VM("buffer_load_dwordx4 v%d, s[%d:%d], s%d offen %s lds" % (vDW, sW, sW + 3, sT0, cfg.w_flags),
                    tag=("fill", n), lds=(n % NSLOT, n))
            out.append((pre, op))
    elif k[0] == "XA":
        u = k[1]
        for j in range(8):
            pre = [I("s_add_u32 m0, s%d, %d" % (sT3, base + PITCH * j)),
                   I("s_mov_b32 s%d, 0x%x" % (sT0, u * 128 + j * 896))]
            nn = n + (j >> 2)
            op = VM("buffer_load_dwordx4 v%d, s[%d:%d], s%d offen %s lds" % (vDX, sX, sX + 3, sT0, cfg.w_flags),
                    tag=("fill", nn), lds=(nn % NSLOT, nn))
            out.append((pre, op))
    elif k[0] == "XB":
        pass
    elif k[0] == "O":
        nc, dh = divmod(k[1], 2)
        for i in range(4):
            pre = [I("s_add_u32 m0, s%d, %d" % (sWOFF, base + 160 * i))]
            if i == 0: pre.append(I("s_mov_b32 s%d, 0x%x" % (sT1, dh * 128 * 896 + nc * 128)))
            op = VM("buffer_load_dwordx4 v%d, s[%d:%d], s%d offen offset:%d %s lds" % (vDO, sO, sO + 3, sT1, 896 * i, cfg.w_flags),
                    tag=("fill", n), lds=(n % NSLOT, n))
            out.append((pre, op))
    return out

def place_pieces(g, pieces, gaps):
    last = -1
    for (pre, op), k0 in zip(pieces, gaps):
        k = max(k0, last + 2, 1)
        while g.used[k] + 1 > g.cap: k += 1
        g.sc[k - 1].append(pre[0])
        for p in pre[1:]: g.sc[k].append(p)
        g.v(k, op); last = k

def linear_pieces(pieces):
    out = []
    for pre, op in pieces:
        out += pre[1:] + [pre[0], I("s_nop 0"), op]
    return out

def softmax_ops(G, Pd, order):
    ops = []; first = [True, True]; lastread = {}
    k = 0
    for kb, qi in order:
        for pr in range(2):
            s0 = G + 8 * qi + 4 * kb + 2 * pr
            ta, tb = T + 2 * (k % 4), T + 2 * (k % 4) + 1
            ea = EXP("v_exp_f32 v%d, v%d" % (ta, s0)); eb = EXP("v_exp_f32 v%d, v%d" % (tb, s0 + 1))
            if first[qi]:
                adds = [I("v_add_f32 v%d, v%d, v%d" % (LT + qi, ta, tb))]; first[qi] = False
            else:
                adds = [I("v_add_f32 v%d, v%d, v%d" % (LT + qi, LT + qi, ta)), I("v_add_f32 v%d, v%d, v%d" % (LT + qi, LT + qi, tb))]
            cv = I("v_cvt_pk_bf16_f32 v%d, v%d, v%d" % (Pd + 4 * qi + 2 * kb + pr, ta, tb))
            ops.append(dict(ea=ea, eb=eb, adds=adds, cv=cv, slot=k % 4, kb=kb))
            k += 1
    return ops

def place_softmax(g, pairs, start, pace, ready=None):
    free_at = [0] * 4
    last_add = {}
    end = 0
    for k, p in enumerate(pairs):
        e0 = max(int(start + k * pace), free_at[p["slot"]] + 1, (ready or {}).get(p["kb"], 0))
        ga = g.place(p["ea"], e0)
        gb = g.place(p["eb"], ga + 1)
        gc = gb + 1
        prev = max(last_add.values()) if last_add else 0
        for a in p["adds"]:
            gc = g.place(a, max(gc, prev))
            prev = gc
        last_add[k] = prev
        gv = g.place(p["cv"], gb + 1)
        free_at[p["slot"]] = max(prev, gv)
        end = max(end, prev, gv)
    return end

def check_ops():
    return [I("v_max_f32 v%d, v%d, v%d" % (vTMP, LT, LT + 1)),
            I("v_cmp_lt_f32 vcc, s%d, v%d" % (sTHR, vTMP))]

def G_of(i): return GY if i % 2 == 0 else GZ
def P01_of(i): return PA if i % 2 == 0 else PB
def Preg(i, qb): return (P01_of(i) + 4 * qb) if qb < 2 else (PC + 4 * (qb - 2))

class Sites:
    def __init__(self): self.list = {}
    def new(self, variant, label):
        self.list.setdefault(variant, []).append(label)
        return len(self.list[variant]) - 1

def k_read(t, kb, s, buf):
    n = n_of("K", t)
    return DS("ds_read_b128 %s, v%d offset:%d" % (vr(F + 4 * buf), vK, kb * 8448 + s * 64), tag=("K", t, kb, s), lds=(n % NSLOT, n))
def v_read(t, db, half, buf):
    n = n_of("V", t)
    return DS("ds_read_b64_tr_b16 %s, v%d offset:%d" % (vr(F + 4 * buf + 2 * half, 2), vV, db * 32 + half * 8448), tag=("V", t, db), lds=(n % NSLOT, n))

def qk_mfmas(t, first_c=None):
    ms = []
    for kb in range(2):
        for sp in range(4):
            p = kb * 4 + sp
            for qb in range(4):
                G = GX if qb < 2 else G_of(t)
                d = vr(G + 8 * (qb & 1) + 4 * kb)
                for e in range(2):
                    s = 2 * sp + e
                    buf = 2 * (p & 1) + e
                    if s == 0: c = first_c if first_c is not None else vr(NEGM + 4 * qb)
                    else: c = d
                    ms.append(MF(d, vr(F + 4 * buf), vr(QF + 16 * s + 4 * qb), c))
    return ms

def pair_reads(t, p):
    kb, sp = divmod(p, 4)
    return [k_read(t, kb, 2 * sp + e, 2 * (p & 1) + e) for e in range(2)]
def pair_tags(t, p):
    kb, sp = divmod(p, 4)
    return [("K", t, kb, 2 * sp), ("K", t, kb, 2 * sp + 1)]

def label_for(i, loop):
    return ("L%d" % (i % 4)) if loop else ("P%d" % i)

def iteration(cfg, i, sites, loop=False, emit_site=True):
    ops = []
    last = (i == 31)
    nm = label_for(i, loop)
    n1, n2 = 35 + 2 * i, 36 + 2 * i
    def pieces(n):
        k = fill_kind(n)
        if n == 93: return []
        return fill_pieces(cfg, n, dyn=(k[0] in "KV"))
    def bump(n):
        k = fill_kind(n)
        if n == 93 or k[0] == "O": return []
        r = sSOK if k[0] == "K" else sSOV
        return [I("s_add_u32 s%d, s%d, 0x4000" % (r, r))]
    sm = softmax_ops(G_of(i), PC, [(0, 0), (0, 1), (1, 0), (1, 1)])
    ladd_prev = [I("v_add_f32 v%d, v%d, v%d" % (L + q, L + q, LT + q)) for q in range(2)]
    if not last:
        g = Gaps(qk_mfmas(i + 1))
        for p in range(7):
            for e, r in enumerate(pair_reads(i + 1, p + 1)): g.v(8 * p + e, r)
            g.s(8 * p + 7, WAIT_DS(*pair_tags(i + 1, p + 1)))
        for j, (db, h) in enumerate([(0, 0), (0, 1), (1, 0), (1, 1)]): g.v(56 + j, v_read(i, db, h, db))
        g.s(63, WAIT_DS(("V", i, 0)))
        g.v(0, ladd_prev[0]); g.v(1, ladd_prev[1])
        place_pieces(g, pieces(n1), [9, 21, 33, 45])
        for b in bump(n1): g.s(50, b)
        end = place_softmax(g, sm, 2, 6.5)
        c = check_ops()
        k0 = g.place(c[0], max(end + 1, 58)); k1 = g.place(c[1], k0 + 1)
        assert k1 <= 63, (i, k1)
        ops += g.ops()
    else:
        ops += [ladd_prev[0], ladd_prev[1]]
        ops += linear_pieces(pieces(n1))
        ops += [v_read(i, db, h, db) for db, h in [(0, 0), (0, 1), (1, 0), (1, 1)]]
        for p in sm:
            ops += [p["ea"], p["eb"], I("s_nop 0")] + p["adds"] + [p["cv"]]
        ops += check_ops()
        ops += [WAIT_DS(("V", i, 0))]
    variant = ("p1", i % 2, last)
    res = "R1_" + nm
    if emit_site:
        sid = sites.new(variant, res)
        ops.append(I("s_cbranch_vccnz S_%s" % res))
    else:
        ops.append(I("s_cbranch_vccnz S_%s" % res))
    ops.append(LABEL(res))
    ops += [WAIT_VM(*[("fill", n) for n in range(0, 33 + 2 * i)]), BARRIER()]
    ms = []
    for db in range(16):
        for qb in range(4):
            c = "0" if i == 0 else ar(ACC(db, qb))
            ms.append(MF(ar(ACC(db, qb)), vr(F + 4 * (db & 3)), vr(Preg(i, qb)), c))
    g = Gaps(ms)
    for j, (db, h) in enumerate([(2, 0), (2, 1), (3, 0), (3, 1)]): g.v(j, v_read(i, db, h, db & 3))
    for db in range(1, 13):
        for h in range(2): g.v(4 * db + h, v_read(i, db + 3, h, (db + 3) & 3))
    for db in range(15): g.s(4 * db + 3, WAIT_DS(("V", i, db + 1)))
    ladd = [I("v_add_f32 v%d, v%d, v%d" % (L + 2 + q, L + 2 + q, LT + q)) for q in range(2)]
    g.v(0, ladd[0]); g.v(1, ladd[1])
    if i + 2 <= 31:
        dk = ((n_of("K", i + 2) % NSLOT) - (n_of("K", i + 1) % NSLOT)) * SLOT
        g.place(I("v_add_u32 v%d, 0x%x, v%d" % (vK, dk & 0xffffffff, vK)), 4)
        for e, r in enumerate(pair_reads(i + 2, 0)): g.v(56 + e, r)
        g.s(63, WAIT_DS(*pair_tags(i + 2, 0)))
    if not last:
        dv = ((n_of("V", i + 1) % NSLOT) - (n_of("V", i) % NSLOT)) * SLOT
        g.place(I("v_add_u32 v%d, 0x%x, v%d" % (vV, dv & 0xffffffff, vV)), 52)
    pcs = pieces(n2)
    if last: pcs = pcs + pieces(n2 + 1)
    place_pieces(g, pcs, [6, 18, 30, 42, 46, 50, 54, 58])
    for b in bump(n2): g.s(48, b)
    if not last:
        sm = softmax_ops(GX, P01_of(i + 1), [(0, 0), (0, 1), (1, 0), (1, 1)])
        end = place_softmax(g, sm, 2, 6.5)
        c = check_ops()
        k0 = g.place(c[0], max(end + 1, 58)); k1 = g.place(c[1], k0 + 1)
        assert k1 <= 63, (i, k1)
    ops += g.ops()
    if not last:
        res = "R2_" + nm
        if emit_site: sites.new(("p2", i % 2, False), res)
        ops.append(I("s_cbranch_vccnz S_%s" % res))
        ops.append(LABEL(res))
    return ops

def xlane(op, r, tmp):
    return [I("v_mov_b32 v%d, v%d" % (tmp, r)), I("s_nop 1"),
            I("v_permlane16_swap_b32 v%d, v%d" % (r, tmp)), I("s_nop 1"),
            I("%s v%d, v%d, v%d" % (op, r, r, tmp)),
            I("v_mov_b32 v%d, v%d" % (tmp, r)), I("s_nop 1"),
            I("v_permlane32_swap_b32 v%d, v%d" % (r, tmp)), I("s_nop 1"),
            I("%s v%d, v%d, v%d" % (op, r, r, tmp))]
def max8(dst, G):
    return [I("v_max3_f32 v%d, v%d, v%d, v%d" % (dst, G, G + 1, G + 2)),
            I("v_max3_f32 v%d, v%d, v%d, v%d" % (dst, dst, G + 3, G + 4)),
            I("v_max3_f32 v%d, v%d, v%d, v%d" % (dst, dst, G + 5, G + 6)),
            I("v_max_f32 v%d, v%d, v%d" % (dst, dst, G + 7))]

def softmax_linear(G, Pd):
    ops = []
    for p in softmax_ops(G, Pd, [(0, 0), (0, 1), (1, 0), (1, 1)]):
        ops += [p["ea"], p["eb"], I("s_nop 0")] + p["adds"] + [p["cv"]]
    return ops

def slow_path(variant, labels):
    ph, par, last = variant
    ops = []
    name = "SUB_%s_%d_%d" % (ph, par, int(last))
    for k, res in enumerate(labels):
        ops += [LABEL("S_" + res), I("s_mov_b32 s%d, %d" % (sRET, k)), I("s_branch %s" % name)]
    ops += [LABEL(name), I("s_nop 7"), I("s_nop 7")]
    if ph == "p1":
        G = GY if par == 0 else GZ; G2 = None if last else (GZ if par == 0 else GY); Pd = PC; q0 = 2
    else:
        G = GX; G2 = None; Pd = PB if par == 0 else PA; q0 = 0
    d, f, tmp = T, T + 1, T + 2
    for qi in range(2):
        q = q0 + qi
        ops += max8(d, G + 8 * qi) + xlane("v_max_f32", d, tmp)
        ops += [I("v_max_f32 v%d, 0, v%d" % (d, d)),
                I("v_exp_f32_e64 v%d, -v%d" % (f, d)), I("s_nop 0")]
        for r in range(4): ops.append(I("v_sub_f32 v%d, v%d, v%d" % (NEGM + 4 * q + r, NEGM + 4 * q + r, d)))
        ops.append(I("v_mul_f32 v%d, v%d, v%d" % (L + q, L + q, f)))
        for r in range(8): ops.append(I("v_sub_f32 v%d, v%d, v%d" % (G + 8 * qi + r, G + 8 * qi + r, d)))
        if G2 is not None:
            for r in range(8): ops.append(I("v_sub_f32 v%d, v%d, v%d" % (G2 + 8 * qi + r, G2 + 8 * qi + r, d)))
        for db in range(16):
            for r in range(4):
                a = ACC(db, q) + r; t = T + 4 + (r & 3)
                ops += [I("v_accvgpr_read_b32 v%d, a%d" % (t, a))]
            for r in range(4):
                t = T + 4 + (r & 3)
                ops += [I("v_mul_f32 v%d, v%d, v%d" % (t, t, f))]
            for r in range(4):
                a = ACC(db, q) + r; t = T + 4 + (r & 3)
                ops += [I("v_accvgpr_write_b32 a%d, v%d" % (a, t))]
    ops += softmax_linear(G, Pd)
    ops += [I("s_nop 3")]
    for k, res in enumerate(labels[:-1]):
        ops += [I("s_cmp_eq_u32 s%d, %d" % (sRET, k)), I("s_cbranch_scc1 %s" % res)]
    ops += [I("s_branch %s" % labels[-1])]
    return ops

class Stamps:
    def __init__(self, cfg): self.cfg = cfg; self.n = 0
    def __call__(self):
        if not self.cfg.stamps: return []
        r = sSTAMP + 2 * self.n; self.n += 1
        return [I("s_memrealtime s[%d:%d]" % (r, r + 1)), I("s_waitcnt lgkmcnt(0)")]

def prologue(cfg, st):
    o = []
    A = lambda t: o.append(I(t))
    A("s_cmp_ge_u32 s2, 0x100"); A("s_cbranch_scc1 L_end")
    A("s_load_dwordx8 s[40:47], s[0:1], 0"); A("s_load_dwordx2 s[48:49], s[0:1], 32")
    A("s_load_dwordx8 s[52:59], s[0:1], 40"); A("s_load_dwordx2 s[60:61], s[0:1], 72")
    A("s_load_dwordx2 s[62:63], s[0:1], 96")
    o += st()
    A("v_and_b32 v%d, 63, v0" % vLANE)
    A("v_lshrrev_b32 v1, 6, v0")
    A("s_and_b32 s4, s2, 7"); A("s_lshr_b32 s5, s2, 3")
    A("v_readfirstlane_b32 s%d, v1" % sWAVE)
    A("s_lshr_b32 s6, s4, 2")
    A("s_and_b32 s4, s4, 3")
    if cfg.mapping == 2:
        A("s_lshl_b32 s4, s4, 1"); A("s_lshr_b32 s7, s5, 4"); A("s_add_u32 s4, s4, s7")
        A("s_and_b32 s5, s5, 15")
    else:
        A("s_lshl_b32 s4, s4, 2"); A("s_lshr_b32 s7, s5, 3"); A("s_add_u32 s7, s4, s7")
        A("s_and_b32 s4, s5, 7")
        A("s_mov_b32 s5, s7")
    A("s_waitcnt lgkmcnt(0)")
    A("s_cmp_eq_u32 s6, 0")
    for k in range(4): A("s_cselect_b64 s[%d:%d], s[%d:%d], s[%d:%d]" % (40 + 2 * k, 41 + 2 * k, 40 + 2 * k, 41 + 2 * k, 52 + 2 * k, 53 + 2 * k))
    A("s_cselect_b64 s[48:49], s[48:49], s[60:61]")
    def srd(d, p, off_reg, nbytes):
        A("s_add_u32 s%d, s%d, s%d" % (d, p, off_reg)); A("s_addc_u32 s%d, s%d, 0" % (d + 1, p + 1))
        A("s_and_b32 s%d, s%d, 0xffff" % (d + 1, d + 1))
        if isinstance(nbytes, int): A("s_mov_b32 s%d, 0x%x" % (d + 2, nbytes))
        else: A(nbytes)
        A("s_mov_b32 s%d, 0x20000" % (d + 3))
    A("s_lshl_b32 s7, s4, 4"); A("s_add_u32 s7, s7, s5"); A("s_lshl_b32 s50, s7, 19")
    srd(sK, 42, 50, 524288); srd(sV, 44, 50, 524288)
    A("s_lshl_b32 s50, s5, 9")
    srd(sW, 46, 50, "s_sub_u32 s%d, 0x%x, s50" % (sW + 2, 448 * 8192))
    A("s_mul_i32 s50, s4, 0x%x" % 229376); srd(sX, 40, 50, 229376)
    A("s_mul_i32 s50, s5, 0x%x" % 229376); srd(sO, 48, 50, 229376)
    A("s_lshl_b32 s7, s6, 3"); A("s_add_u32 s7, s7, s4")
    A("s_lshl_b32 s51, s7, 4"); A("s_add_u32 s51, s51, s5")
    A("s_mul_i32 s50, s51, 0x%x" % 229376); srd(sP, 62, 50, 229376)
    A("s_mov_b32 s64, s2")
    A("s_mul_i32 s%d, s%d, %d" % (sWOFF, sWAVE, 4 * PITCH))
    A("s_mul_i32 s%d, s%d, %d" % (sT3, sWAVE, 8 * PITCH))
    A("s_mov_b32 s%d, 0x%x" % (sSOK, 4 * 16384)); A("s_mov_b32 s%d, 0x%x" % (sSOV, 3 * 16384))
    A("s_mov_b32 s%d, 0x%x" % (sTHR, (127 + cfg.thr_log2) << 23))
    import struct
    c = struct.unpack("<I", struct.pack("<f", math.log2(math.e) / 16.0))[0]
    A("s_mov_b32 s%d, 0x%x" % (sSCALE, c))
    A("v_and_b32 v1, 15, v%d" % vLANE); A("v_lshrrev_b32 v2, 4, v%d" % vLANE)
    A("v_lshrrev_b32 v3, 2, v1"); A("v_and_b32 v4, 3, v1")
    A("v_lshrrev_b32 v5, 3, v%d" % vLANE); A("v_lshrrev_b32 v6, 2, v5"); A("v_and_b32 v5, 3, v5")
    A("v_lshlrev_b32 v5, 4, v5"); A("v_lshl_add_u32 v5, v6, 3, v5")
    A("s_lshl_b32 s7, s%d, 6" % sWAVE); A("v_add_u32 v5, s7, v5")
    A("v_mul_u32_u24 v5, 896, v5"); A("v_and_b32 v6, 7, v%d" % vLANE)
    A("v_lshl_add_u32 v%d, v6, 4, v5" % vDX)
    A("s_and_b32 s7, s%d, 1" % sWAVE); A("s_lshl_b32 s7, s7, 3")
    A("s_lshr_b32 s50, s%d, 1" % sWAVE); A("s_lshl_b32 s50, s50, 2"); A("s_add_u32 s7, s7, s50")
    A("v_lshlrev_b32 v5, 4, v2"); A("v_add_u32 v5, s7, v5")
    A("v_lshlrev_b32 v5, 13, v5"); A("v_lshl_add_u32 v%d, v1, 4, v5" % vDW)
    return o

def lane_consts_late(cfg):
    o = []
    A = lambda t: o.append(I(t))
    A("v_and_b32 v5, 7, v1"); A("v_mul_u32_u24 v5, %d, v5" % PITCH)
    A("v_lshrrev_b32 v6, 3, v1"); A("v_lshl_add_u32 v5, v6, 9, v5"); A("v_lshl_add_u32 v5, v2, 4, v5")
    A("v_add_u32 v%d, s%d, v5" % (vXr, sT3))
    A("v_add_u32 v%d, 0x%x, v5" % (vK, (n_of("K", 0) % NSLOT) * SLOT))
    A("v_and_b32 v5, 1, v2"); A("v_lshl_add_u32 v5, v5, 2, v3"); A("v_mov_b32 v7, v5")
    A("v_mul_u32_u24 v5, %d, v5" % PITCH)
    A("v_lshrrev_b32 v6, 1, v2"); A("v_lshl_add_u32 v5, v6, 9, v5"); A("v_lshl_add_u32 v5, v4, 3, v5")
    A("v_add_u32 v%d, 0x%x, v5" % (vV, (n_of("V", 0) % NSLOT) * SLOT))
    A("v_lshlrev_b32 v5, 10, v7"); A("v_lshrrev_b32 v8, 1, v7"); A("v_lshl_add_u32 v5, v8, 6, v5")
    A("v_and_b32 v8, 1, v7"); A("v_lshl_add_u32 v5, v8, 3, v5")
    A("v_lshl_add_u32 v5, v6, 8, v5"); A("v_lshl_add_u32 v%d, v4, 4, v5" % vWb)
    A("s_lshr_b32 s7, s%d, 1" % sWAVE); A("s_lshl_b32 s7, s7, 13")
    A("s_and_b32 s50, s%d, 1" % sWAVE); A("s_lshl_b32 s50, s50, 11"); A("s_add_u32 s7, s7, s50")
    A("v_lshrrev_b32 v5, 5, v%d" % vLANE); A("v_lshlrev_b32 v5, 12, v5")
    A("v_and_b32 v6, 31, v%d" % vLANE); A("v_lshl_add_u32 v5, v6, 4, v5")
    A("v_add_u32 v%d, s7, v5" % vDMA)
    return o

def o_consts():
    o = []
    A = lambda t: o.append(I(t))
    t1, t2, t3, t4, t5, t6 = [T + k for k in range(6)]
    A("v_and_b32 v%d, 15, v%d" % (t1, vLANE)); A("v_lshrrev_b32 v%d, 4, v%d" % (t2, vLANE))
    A("v_lshrrev_b32 v%d, 2, v%d" % (t3, t1)); A("v_and_b32 v%d, 3, v%d" % (t4, t1))
    A("v_and_b32 v%d, 1, v%d" % (t5, t2)); A("v_lshl_add_u32 v%d, v%d, 2, v%d" % (t5, t5, t3))
    A("v_mul_u32_u24 v%d, %d, v%d" % (t5, PITCH, t5))
    A("v_lshrrev_b32 v%d, 1, v%d" % (t6, t2)); A("v_lshl_add_u32 v%d, v%d, 7, v%d" % (t5, t6, t5))
    A("v_lshl_add_u32 v%d, v%d, 3, v%d" % (vA, t4, t5))
    A("s_lshr_b32 s7, s%d, 1" % sWAVE); A("s_lshl_b32 s7, s7, 6")
    A("s_and_b32 s50, s%d, 1" % sWAVE); A("s_lshl_b32 s50, s50, 2"); A("s_add_u32 s7, s7, s50")
    A("v_lshrrev_b32 v%d, 3, v%d" % (t5, vLANE)); A("v_lshlrev_b32 v%d, 3, v%d" % (t5, t5))
    A("v_add_u32 v%d, s7, v%d" % (t5, t5)); A("v_mul_u32_u24 v%d, 896, v%d" % (t5, t5))
    A("v_and_b32 v%d, 7, v%d" % (t6, vLANE)); A("v_lshl_add_u32 v%d, v%d, 4, v%d" % (vB, t6, t5))
    A("s_mul_i32 s7, s%d, 57344" % sWAVE)
    A("v_lshlrev_b32 v%d, 4, v%d" % (t5, vLANE)); A("v_add_u32 v%d, s7, v%d" % (vC, t5))
    return o

def x_reads(u):
    n = n_of("X", u)
    out = []
    for e in range(2):
        for qb in range(4):
            b = 32 * (u & 1) + (e * 4 + qb) * 4
            out.append(DS("ds_read_b128 %s, v%d offset:%d" % (vr(b), vD, qb * 128 + e * 64), tag=("X", u), lds=(n % NSLOT, n)))
    return out
def w_reads(t, dbl):
    u, e = divmod(t, 2); n = n_of("W", u, e)
    st = dbl & 1; out = []
    for kk in range(2):
        for h in range(2):
            out.append(DS("ds_read_b64_tr_b16 %s, v%d offset:%d" % (vr(F + 4 * (2 * st + kk) + 2 * h, 2), vW, 8448 * h + 512 * kk + 64 * (dbl >> 1) + 8 * (dbl & 1)),
                          tag=("W", t, dbl), lds=(n % NSLOT, n)))
    return out

def qproj(cfg, st):
    o = []
    for n in range(8): o += linear_pieces(fill_pieces(cfg, n))
    o += lane_consts_late(cfg)
    o += [WAIT_VM(("fill", 0), ("fill", 1), ("fill", 2)), BARRIER()]
    o += st()
    o += [I("v_add_u32 v%d, 0x%x, v%d" % (vD, slot_base(n_of("X", 0)), vXr)),
          I("v_add_u32 v%d, 0x%x, v%d" % (vW, slot_base(n_of("W", 0, 0)), vWb))]
    o += x_reads(0) + w_reads(0, 0) + [WAIT_DS("*")]
    for t in range(14):
        u, e = divmod(t, 2)
        ms = []
        for dbl in range(8):
            db = 8 * e + dbl
            for qb in range(4):
                for kk in range(2):
                    c = "0" if (u == 0 and kk == 0) else ar(ACC(db, qb))
                    ms.append(MF(ar(ACC(db, qb)), vr(F + 4 * (2 * (dbl & 1) + kk)), vr(32 * (u & 1) + (kk * 4 + qb) * 4), c))
        g = Gaps(ms)
        for dbl in range(7):
            for j, r in enumerate(w_reads(t, dbl + 1)): g.v(8 * dbl + j, r)
            g.s(8 * dbl + 7, WAIT_DS(("W", t, dbl + 1)))
        need = 4 * u + 3 if e == 0 else 4 * u + 6
        if t == 13: need = 27
        g.after(40, WAIT_VM(*[("fill", n) for n in range(need + 1)])); g.after(40, BARRIER())
        if t < 13:
            u2, e2 = divmod(t + 1, 2)
            g.v(52, I("v_add_u32 v%d, 0x%x, v%d" % (vW, slot_base(n_of("W", u2, e2)), vWb)))
            for j, r in enumerate(w_reads(t + 1, 0)): g.v(56 + j, r)
            g.s(63, WAIT_DS(("W", t + 1, 0), ("X", u2)))
        if e == 1 and u < 6:
            g.v(41, I("v_add_u32 v%d, 0x%x, v%d" % (vD, slot_base(n_of("X", u + 1)), vXr)))
            for j, r in enumerate(x_reads(u + 1)): g.place(r, 42 + j)
        ns = ([4 * u + 7] if u > 0 else []) if e == 0 else [4 * u + 10]
        pcs = []
        for n in ns: pcs += fill_pieces(cfg, n)
        place_pieces(g, pcs, [43 + 5 * j for j in range(len(pcs))])
        if e == 1:
            held = []
            for n in (4 * u + 8, 4 * u + 9): held += fill_pieces(cfg, n)
            place_pieces(g, held, [4 + 4 * j for j in range(len(held))])
        o += g.ops()
    return o

def q_convert():
    o = [I("s_nop 7")]
    k = 0
    for s in range(8):
        for qb in range(4):
            for half in range(2):
                for pr in range(2):
                    a = ACC(2 * s + half, qb) + 2 * pr
                    ta, tb = T + 2 * (k % 4), T + 2 * (k % 4) + 1; k += 1
                    o += [I("v_accvgpr_read_b32 v%d, a%d" % (ta, a)), I("v_accvgpr_read_b32 v%d, a%d" % (tb, a + 1)),
                          I("v_mul_f32 v%d, s%d, v%d" % (ta, sSCALE, ta)), I("v_mul_f32 v%d, s%d, v%d" % (tb, sSCALE, tb)),
                          I("v_cvt_pk_bf16_f32 v%d, v%d, v%d" % (QF + 16 * s + 4 * qb + 2 * half + pr, ta, tb))]
    return o

def attn_prologue(cfg):
    o = [WAIT_VM(("fill", 28), ("fill", 29), ("fill", 30)), BARRIER()]
    o += pair_reads(0, 0) + [WAIT_DS("*")]
    g = Gaps(qk_mfmas(0, first_c="0"))
    for p in range(7):
        for e, r in enumerate(pair_reads(0, p + 1)): g.v(8 * p + e, r)
        g.s(8 * p + 7, WAIT_DS(*pair_tags(0, p + 1)))
    dk = ((n_of("K", 1) % NSLOT) - (n_of("K", 0) % NSLOT)) * SLOT
    g.v(52, I("v_add_u32 v%d, 0x%x, v%d" % (vK, dk & 0xffffffff, vK)))
    for e, r in enumerate(pair_reads(1, 0)): g.v(56 + e, r)
    o += g.ops()
    o += [I("s_nop 7")]
    for q in range(4):
        G = (GX if q < 2 else GY) + 8 * (q & 1)
        d = T + q
        o += max8(d, G)
    for q in range(4):
        o += xlane("v_max_f32", T + q, T + 4)
    for q in range(4):
        G = (GX if q < 2 else GY) + 8 * (q & 1)
        for r in range(4): o.append(I("v_sub_f32 v%d, 0, v%d" % (NEGM + 4 * q + r, T + q)))
        for r in range(8): o.append(I("v_sub_f32 v%d, v%d, v%d" % (G + r, G + r, T + q)))
        o.append(I("v_mov_b32 v%d, 0" % (L + q)))
    o += softmax_linear(GX, PA)
    o += [WAIT_DS(*pair_tags(1, 0)), I("s_nop 1")]
    return o

def o_convert():
    o = []
    for q in range(4): o += xlane("v_add_f32", L + q, T)
    for q in range(4): o.append(I("v_rcp_f32 v%d, v%d" % (L + q, L + q)))
    o.append(I("s_nop 7"))
    k = 0
    for s in range(8):
        for qb in range(4):
            for half in range(2):
                for pr in range(2):
                    a = ACC(2 * s + half, qb) + 2 * pr
                    ta, tb = T + 2 * (k % 4), T + 2 * (k % 4) + 1; k += 1
                    o += [I("v_accvgpr_read_b32 v%d, a%d" % (ta, a)), I("v_accvgpr_read_b32 v%d, a%d" % (tb, a + 1)),
                          I("v_mul_f32 v%d, v%d, v%d" % (ta, L + qb, ta)), I("v_mul_f32 v%d, v%d, v%d" % (tb, L + qb, tb)),
                          I("v_cvt_pk_bf16_f32 v%d, v%d, v%d" % (QF + 16 * s + 4 * qb + 2 * half + pr, ta, tb))]
    return o

def wo_reads(j, nb):
    n = n_of("O", j); st = OF_A if nb % 2 == 0 else OF_B
    out = []
    for s in range(4):
        for h in range(2):
            out.append(DS("ds_read_b64_tr_b16 %s, v%d offset:%d" % (vr(st + 4 * s + 2 * h, 2), vO, 8448 * (s >> 1) + 512 * (s & 1) + 256 * h + 32 * nb),
                          tag=("O", j, nb), lds=(n % NSLOT, n)))
    return out

def store_ops(cfg, nc):
    base = 64 * (nc & 1); groups = []
    for u in range(2):
        for qb in range(4):
            k = u * 4 + qb; r = OT + 4 * (k % 4) ; tt = OT + 16 + 4 * (k % 4)
            seq = []
            for half in range(2):
                a = base + 16 * (2 * u + half) + 4 * qb
                for pr in range(2):
                    seq += [I("v_accvgpr_read_b32 v%d, a%d" % (tt + 2 * pr, a + 2 * pr)), I("v_accvgpr_read_b32 v%d, a%d" % (tt + 2 * pr + 1, a + 2 * pr + 1))]
                for pr in range(2):
                    seq += [I("v_cvt_pk_bf16_f32 v%d, v%d, v%d" % (r + 2 * half + pr, tt + 2 * pr, tt + 2 * pr + 1))]
            pre = I("s_mov_b32 s%d, 0x%x" % (sT2, nc * 8192 + u * 4096))
            stv = VM("buffer_store_dwordx4 %s, v%d, s[%d:%d], s%d offen offset:%d %s" % (vr(r), vC, sP, sP + 3, sT2, qb * 1024, cfg.st_flags), tag=("st", nc))
            groups.append((seq, pre, stv))
    return groups

def oproj(cfg):
    o = [I("v_add_u32 v%d, 0x%x, v%d" % (vO, slot_base(n_of("O", 0)), vA))]
    o += wo_reads(0, 0) + [WAIT_DS("*")]
    pend = []
    for j in range(14):
        nc, dh = divmod(j, 2)
        ms = []
        for nb in range(4):
            st = OF_A if nb % 2 == 0 else OF_B
            for qb in range(4):
                a = 64 * (nc & 1) + 16 * nb + 4 * qb
                for s in range(4):
                    c = "0" if (dh == 0 and s == 0) else ar(a)
                    ms.append(MF(ar(a), vr(st + 4 * s), vr(QF + 16 * (4 * dh + s) + 4 * qb), c))
        g = Gaps(ms)
        for nb in range(3):
            for k, r in enumerate(wo_reads(j, nb + 1)): g.v(16 * nb + k, r)
            g.s(16 * nb + 15, WAIT_DS(("O", j, nb + 1)))
        g.after(40, WAIT_VM(*[("fill", n) for n in range(0, min(96 + j, 108))])); g.after(40, BARRIER())
        if j < 13:
            g.v(47, I("v_add_u32 v%d, 0x%x, v%d" % (vO, slot_base(n_of("O", j + 1)), vA)))
            for k, r in enumerate(wo_reads(j + 1, 0)): g.v(48 + k, r)
            g.s(63, WAIT_DS(("O", j + 1, 0)))
        ns = [100, 101] if j == 0 else ([101 + j] if 101 + j <= 107 else [])
        pcs = []
        for n in ns: pcs += fill_pieces(cfg, n)
        place_pieces(g, pcs, [42 + 2 * k for k in range(len(pcs))])
        if nc >= 1:
            grp = store_ops(cfg, nc - 1)[4 * dh: 4 * dh + 4]
            k = 8 if dh == 0 else 0
            for seq, pre, stv in grp:
                for op in seq: k = g.place(op, k)
                k = g.place(stv, k + 1); g.sc[k].append(pre)
                k += 1
        o += g.ops()
    o.append(I("s_nop 7"))
    for seq, pre, stv in store_ops(cfg, 6): o += seq + [pre, stv]
    return o

def stamps_out(cfg, st):
    if not cfg.stamps: return []
    o = []
    A = lambda t: o.append(I(t))
    A("s_waitcnt vmcnt(0)")
    o += st()
    A("s_load_dwordx2 s[4:5], s[0:1], 96"); A("s_waitcnt lgkmcnt(0)")
    A("s_add_u32 s4, s4, 0x8000000"); A("s_addc_u32 s5, s5, 0")
    A("s_and_b32 s5, s5, 0xffff"); A("s_mov_b32 s6, 0x100000"); A("s_mov_b32 s7, 0x20000")
    A("s_lshl_b32 s50, s64, 2"); A("s_add_u32 s50, s50, s%d" % sWAVE); A("s_lshl_b32 s50, s50, 7")
    A("v_mov_b32 v1, s50")
    for k in range(st.n):
        A("v_mov_b32 v2, s%d" % (sSTAMP + 2 * k)); A("v_mov_b32 v3, s%d" % (sSTAMP + 2 * k + 1))
        A("buffer_store_dwordx2 v[2:3], v1, s[4:7], 0 offen offset:%d" % (8 * k))
        A("s_nop 1")
    return o

def dump_qf(cfg):
    o = []
    A = lambda t: o.append(I(t))
    A("s_load_dwordx2 s[4:5], s[0:1], 96"); A("s_waitcnt lgkmcnt(0)")
    A("s_add_u32 s4, s4, 0x4000000"); A("s_addc_u32 s5, s5, 0")
    A("s_and_b32 s5, s5, 0xffff"); A("s_mov_b32 s6, 0x2000000"); A("s_mov_b32 s7, 0x20000")
    A("s_lshl_b32 s50, s64, 2"); A("s_add_u32 s50, s50, s%d" % sWAVE); A("s_lshl_b32 s50, s50, 15")
    A("v_lshlrev_b32 v%d, 4, v%d" % (vTMP, vLANE)); A("v_add_u32 v%d, s50, v%d" % (vTMP, vTMP))
    for k in range(32):
        A("s_mov_b32 s51, %d" % (k * 1024))
        o.append(VM("buffer_store_dwordx4 %s, v%d, s[4:7], s51 offen" % (vr(4 * k), vTMP)))
    A("s_waitcnt vmcnt(0)")
    return o

def reduce_kernel():
    o = []
    A = lambda t: o.append(t)
    A("s_cmp_ge_u32 s2, 896"); A("s_cbranch_scc1 R_end")
    A("s_load_dwordx2 s[4:5], s[0:1], 96"); A("s_load_dwordx2 s[6:7], s[0:1], 80")
    A("v_lshrrev_b32 v1, 6, v0"); A("v_and_b32 v2, 63, v0"); A("s_nop 0")
    A("v_readfirstlane_b32 s8, v1")
    A("s_mul_i32 s9, s2, 1171"); A("s_lshr_b32 s9, s9, 16")
    A("s_mul_i32 s10, s9, 56"); A("s_sub_u32 s10, s2, s10")
    A("s_lshl_b32 s10, s10, 2"); A("s_add_u32 s10, s10, s8")
    A("s_waitcnt lgkmcnt(0)")
    A("s_mul_i32 s11, s9, 0x%x" % (16 * 229376))
    A("s_add_u32 s12, s4, s11"); A("s_addc_u32 s13, s5, 0"); A("s_and_b32 s13, s13, 0xffff")
    A("s_mov_b32 s14, 0x%x" % (16 * 229376)); A("s_mov_b32 s15, 0x20000")
    A("s_lshl_b32 s11, s10, 10"); A("v_lshlrev_b32 v3, 4, v2"); A("v_add_u32 v3, s11, v3")
    for h in range(16):
        A("s_mov_b32 s20, 0x%x" % (h * 229376))
        A("buffer_load_dwordx4 v[%d:%d], v3, s[12:15], s20 offen" % (16 + 4 * h, 19 + 4 * h))
    A("s_mul_i32 s21, s10, 1171"); A("s_lshr_b32 s21, s21, 16")
    A("s_mul_i32 s22, s21, 56"); A("s_sub_u32 s22, s10, s22")
    A("s_lshr_b32 s23, s22, 3"); A("s_bfe_u32 s24, s22, 0x10002"); A("s_and_b32 s25, s22, 3")
    A("s_lshr_b32 s26, s9, 3"); A("s_and_b32 s27, s9, 7")
    A("s_lshl_b32 s28, s27, 8"); A("s_lshl_b32 s29, s21, 6"); A("s_add_u32 s28, s28, s29")
    A("s_lshl_b32 s29, s25, 4"); A("s_add_u32 s28, s28, s29")
    A("s_mul_i32 s28, s28, 1792")
    A("s_mul_i32 s29, s26, 896"); A("s_add_u32 s28, s28, s29")
    A("s_lshl_b32 s29, s23, 7"); A("s_add_u32 s28, s28, s29")
    A("s_lshl_b32 s29, s24, 6"); A("s_add_u32 s28, s28, s29")
    A("v_and_b32 v4, 15, v2"); A("v_mul_u32_u24 v4, 1792, v4"); A("v_lshrrev_b32 v5, 4, v2")
    A("v_lshl_add_u32 v4, v5, 3, v4"); A("v_add_u32 v4, s28, v4")
    A("s_mov_b32 s16, s6"); A("s_and_b32 s17, s7, 0xffff"); A("s_mov_b32 s18, 0x%x" % (2048 * 1792)); A("s_mov_b32 s19, 0x20000")
    for k in range(8): A("v_mov_b32 v%d, 0" % (8 + k))
    for h in range(16):
        A("s_waitcnt vmcnt(%d)" % (15 - h))
        for k in range(4):
            r = 16 + 4 * h + k
            A("v_lshlrev_b32 v6, 16, v%d" % r); A("v_and_b32 v7, 0xffff0000, v%d" % r)
            A("v_add_f32 v%d, v%d, v6" % (8 + 2 * k, 8 + 2 * k)); A("v_add_f32 v%d, v%d, v7" % (9 + 2 * k, 9 + 2 * k))
    for k in range(4): A("v_cvt_pk_bf16_f32 v%d, v%d, v%d" % (16 + k, 8 + 2 * k, 9 + 2 * k))
    A("buffer_store_dwordx2 v[16:17], v4, s[16:19], 0 offen")
    A("buffer_store_dwordx2 v[18:19], v4, s[16:19], 0 offen offset:32")
    A("R_end:"); A("s_endpgm")
    return o

def descriptor(name, vgpr, accum, sgpr=102):
    return [".amdhsa_kernel %s" % name, "  .amdhsa_next_free_vgpr %d" % vgpr, "  .amdhsa_next_free_sgpr %d" % sgpr,
            "  .amdhsa_accum_offset %d" % accum, "  .amdhsa_group_segment_fixed_size 0", "  .amdhsa_kernarg_size 104",
            "  .amdhsa_user_sgpr_count 2", "  .amdhsa_user_sgpr_kernarg_segment_ptr 1",
            "  .amdhsa_system_sgpr_workgroup_id_x 1", "  .amdhsa_float_denorm_mode_32 3", ".end_amdhsa_kernel"]

def build(cfg):
    st = Stamps(cfg); sites = Sites(); lin = Linear()
    code = []
    trace = []
    def seg(ops, static=True):
        r = lin.feed(ops); trace.extend(r)
        if static: code.extend(r)
        return r
    seg(prologue(cfg, st))
    seg(qproj(cfg, st))
    seg(st())
    seg([BARRIER()] if False else [])
    seg(q_convert())
    if cfg.dump == "q": seg(dump_qf(cfg))
    seg(st())
    seg(attn_prologue(cfg))
    seg(iteration(cfg, 0, sites))
    seg(st())
    seg([I("s_mov_b32 s%d, 7" % sCNT), LABEL("L_loop")])
    body = None
    for trip in range(7):
        cur = []
        for k in range(4):
            i = 1 + 4 * trip + k
            cur += seg(iteration(cfg, i, sites, loop=True, emit_site=(trip == 0)), static=False)
        if body is None: body = cur
        else:
            assert texts(cur) == texts(body), "loop body differs in trip %d" % trip
    code.extend(body)
    seg([I("s_sub_u32 s%d, s%d, 1" % (sCNT, sCNT)), I("s_cmp_lg_u32 s%d, 0" % sCNT), I("s_cbranch_scc1 L_loop")])
    seg(st())
    seg(o_consts())
    for i in (29, 30, 31): seg(iteration(cfg, i, sites))
    seg(st())
    seg(o_convert())
    if cfg.dump == "o": seg(dump_qf(cfg))
    seg(st())
    seg(oproj(cfg))
    seg(stamps_out(cfg, st))
    seg([LABEL("L_end"), I("s_endpgm")])
    ne = check_hazards(trace, "main") + check_counters(trace, "main") + check_lds(trace, "main")
    slow = []
    for variant, labels in sites.list.items():
        sp = slow_path(variant, labels)
        ne += check_hazards(sp, "slow")
        slow += sp
    if ne: raise SystemExit("%d checker findings" % ne)
    out = []
    out.append("; @launch kernel=%s_kernel grid=(256,1,1) block=(256,1,1) lds=%d" % (NAME, LDS_BYTES))
    out.append("; @launch kernel=mha_reduce_kernel grid=(896,1,1) block=(256,1,1) lds=0")
    out.append('.amdgcn_target "amdgcn-amd-amdhsa--gfx950"')
    out.append(".text")
    k = NAME + "_kernel"
    out += [".globl %s" % k, ".p2align 8", ".type %s,@function" % k, k + ":"]
    for op in code + slow: out.append(op.text if op.kind == "label" else "    " + op.text)
    k2 = "mha_reduce_kernel"
    out += [".globl %s" % k2, ".p2align 8", ".type %s,@function" % k2, k2 + ":"]
    for t in reduce_kernel(): out.append(t if t.endswith(":") else "    " + t)
    out += ['.section .rodata,"a"', ".p2align 6"] + descriptor(k, 512, 256)
    out += [".p2align 6"] + descriptor(k2, 96, 96, 40)
    return "\n".join(out) + "\n", trace

if __name__ == "__main__":
    cfg = Cfg()
    path = sys.argv[1] if len(sys.argv) > 1 else "out.s"
    for a in sys.argv[2:]:
        k, v = a.split("=")
        cur = getattr(cfg, k)
        setattr(cfg, k, (v == "1") if isinstance(cur, bool) else int(v) if isinstance(cur, int) else v)
    text, trace = build(cfg)
    open(path, "w").write(text)
    print("wrote", path, len(text), "bytes;", len(trace), "dynamic ops")
```
